```python
import torch

def _softmax(x, axis=-1):
    return torch.softmax(x, dim=axis)

def _gelu(x):
    return torch.nn.functional.gelu(x, approximate='tanh')

def _silu(x):
    return torch.nn.functional.silu(x)

def _sigmoid(x):
    return torch.sigmoid(x)

def _layernorm(x, axis=-1, eps=1e-05):
    m = x.mean(dim=axis, keepdim=True)
    v = x.var(dim=axis, keepdim=True, unbiased=False)
    return (x - m) / torch.sqrt(v + eps)

def _scatter_add(tgt, idx, src, axis=0):
    return tgt.clone().index_add_(axis, idx, src)

def _segment_sum(src, seg, n):
    out = torch.zeros((n,) + src.shape[1:], dtype=src.dtype)
    return out.index_add_(0, seg, src)

def _pad(x, pw):
    flat = tuple((v for pair in reversed(pw) for v in pair))
    return torch.nn.functional.pad(x, flat)
kernel_name = 'adaLN_cond__sliding_local_dilated__dense_activation_silu__prompt'

def setup_inputs():

    _w = lambda a: (lambda t: t.to(torch.bfloat16) if t.is_floating_point() else t)(torch.as_tensor(a))

    def _A_setup():
        B, S, D = (1, 2048, 512)
        return {'x': _w((lambda *s: torch.randn(*s, dtype=torch.bfloat16) * 0.05)(B, S, D)), 'wqkv': _w((lambda *s: torch.randn(*s, dtype=torch.bfloat16) * 0.05)(D, 3 * D)), 'wo': _w((lambda *s: torch.randn(*s, dtype=torch.bfloat16) * 0.05)(D, D))}
    _A_in = _A_setup()

    def _B_setup():
        B, S, D, F = (1, 2048, 512, 1376)
        return {'x': _w((lambda *s: torch.randn(*s, dtype=torch.bfloat16) * 0.05)(B, S, D)), 'w1': _w((lambda *s: torch.randn(*s, dtype=torch.bfloat16) * 3.2)(D, F) * D ** (-0.5)), 'w2': _w((lambda *s: torch.randn(*s, dtype=torch.bfloat16) * 0.4)(F, D) * F ** (-0.5))}
    _B_in = _B_setup()
    return {'A_x': _A_in['x'], 'A_wqkv': _A_in['wqkv'], 'A_wo': _A_in['wo'], 'B_x': _B_in['x'], 'B_w1': _B_in['w1'], 'B_w2': _B_in['w2'], 'c': _w((lambda *s: torch.randn(*s, dtype=torch.bfloat16) * 0.1)(1, 512) * 8.0), 'w_mod': _w((lambda *s: torch.randn(*s, dtype=torch.bfloat16) * 0.1)(512, 6 * 512) * 512 ** (-0.5) * 8.0)}

def reference(A_x, A_wqkv, A_wo, B_x, B_w1, B_w2, c, w_mod):

    def _A_ref(x, wqkv, wo):
        B, S, D = x.shape
        H = 32
        Dh = D // H
        W, dil = (8, 2)
        qkv = (lambda x, *d: x.permute(*d))((x @ wqkv).reshape(B, S, 3, H, Dh), 2, 0, 3, 1, 4)
        q, k, v = (qkv[0], qkv[1], qkv[2])
        scale = Dh ** (-0.5)
        pos = torch.arange(S)
        off = torch.arange(W) * dil
        idx = pos[:, None] - off[None, :]
        mask = idx >= 0
        idx_c = torch.where(mask, idx, 0).reshape(-1)
        kg = k[:, :, idx_c, :].reshape(B, H, S, W, Dh)
        vg = v[:, :, idx_c, :].reshape(B, H, S, W, Dh)
        logits = torch.einsum('bhsd,bhswd->bhsw', q, kg) * scale
        logits = torch.where(mask[None, None, :, :], logits, -1000000000.0)
        attn = _softmax(logits, axis=-1)
        o = torch.einsum('bhsw,bhswd->bhsd', attn, vg)
        return (lambda x, *d: x.permute(*d))(o, 0, 2, 1, 3).reshape(B, S, D) @ wo

    def _B_ref(x, w1, w2):
        h = torch.einsum('bsd,df->bsf', x, w1)
        h = _silu(h)
        out = torch.einsum('bsf,fd->bsd', h, w2)
        return out
    x = A_x
    mod = (_silu(c) @ w_mod).reshape(c.shape[0], 6, 1, -1)
    sa, ca, ga, sb, cb, gb = (mod[:, 0].clone(), mod[:, 1].clone(), mod[:, 2].clone(), mod[:, 3].clone(), mod[:, 4].clone(), mod[:, 5].clone())
    h = _layernorm(x, axis=-1) * (1 + ca) + sa
    x = x + ga * _A_ref(h, A_wqkv, A_wo)
    h = _layernorm(x, axis=-1) * (1 + cb) + sb
    x = x + gb * _B_ref(h, B_w1, B_w2)
    return x
```

```python
import re

TRANS = ("v_exp_f32", "v_log_f32", "v_rcp_f32", "v_rsq_f32", "v_sqrt_f32", "v_sin_f32", "v_cos_f32")
RMW_DST = ("v_fmac_f32", "v_dot2c_f32_bf16", "v_fmac_f32_dpp", "v_pk_fmac_f16")

_reg_re = re.compile(r"^(-|abs\()?([vas])(\d+)\)?$")
_rng_re = re.compile(r"^(-)?([vas])\[(\d+):(\d+)\]$")


def regs_of(op):
    op = op.strip()
    m = _reg_re.match(op)
    if m:
        return {m.group(2) + m.group(3)}
    m = _rng_re.match(op)
    if m:
        return {m.group(2) + str(i) for i in range(int(m.group(3)), int(m.group(4)) + 1)}
    if op in ("vcc", "vcc_lo", "vcc_hi"):
        return {"vcc"}
    if op in ("exec", "exec_lo", "exec_hi"):
        return {"exec"}
    if op == "m0":
        return {"m0"}
    return set()


def V(i, n=1):
    return f"v{i}" if n == 1 else f"v[{i}:{i+n-1}]"


def A(i, n=1):
    return f"a{i}" if n == 1 else f"a[{i}:{i+n-1}]"


def S(i, n=1):
    return f"s{i}" if n == 1 else f"s[{i}:{i+n-1}]"


def R(i, n=1):
    return V(i, n) if i < 256 else A(i - 256, n)


class Ins:
    __slots__ = ("text", "kind", "rd", "wr", "srcc", "dpp", "trans", "wide_store", "states")


class Asm:
    def __init__(self):
        self.lines = []
        self.hist = []
        self.vm = []
        self.lg = []
        self.nid = 0
        self.nlabel = 0
        self.count = {}

    def raw(self, text):
        self.lines.append(text)

    def comment(self, text):
        self.lines.append("    ; " + text)

    def label(self, name):
        self.flush_hazards()
        self.lines.append(name + ":")

    def newlabel(self, p="L"):
        self.nlabel += 1
        return f"{p}_{self.nlabel}"

    def _push(self, ins):
        self.lines.append("    " + ins.text)
        self.hist.append(ins)
        if len(self.hist) > 24:
            self.hist.pop(0)

    def _nop(self, n):
        while n > 0:
            k = min(n, 16)
            ins = Ins()
            ins.text = f"s_nop {k-1}"
            ins.kind = "nop"
            ins.rd = set(); ins.wr = set(); ins.srcc = set()
            ins.dpp = ins.trans = ins.wide_store = False
            ins.states = k
            self._push(ins)
            n -= k

    def flush_hazards(self):
        need = 0
        dist = 0
        for p in reversed(self.hist):
            req = 0
            if p.kind == "mfma":
                req = 8
            elif p.kind == "valu":
                req = 5 if any(r[0] == "s" or r == "vcc" for r in p.wr) else 3
            elif p.wide_store:
                req = 2
            elif p.kind == "salu" and "m0" in p.wr:
                req = 1
            need = max(need, req - dist)
            dist += p.states
        self._nop(need)

    def _wait(self, vm=None, lg=None):
        parts = []
        if vm is not None:
            parts.append(f"vmcnt({min(vm, 63)})")
            if vm == 0:
                self.vm = []
            else:
                self.vm = self.vm[-vm:] if len(self.vm) > vm else self.vm
        if lg is not None:
            parts.append(f"lgkmcnt({min(lg, 15)})")
            if lg == 0:
                self.lg = []
            else:
                self.lg = self.lg[-lg:] if len(self.lg) > lg else self.lg
        ins = Ins()
        ins.text = "s_waitcnt " + " ".join(parts)
        ins.kind = "salu"
        ins.rd = set(); ins.wr = set(); ins.srcc = set()
        ins.dpp = ins.trans = ins.wide_store = False
        ins.states = 1
        self._push(ins)

    def wait_all(self, vm=True, lg=True):
        v = 0 if (vm and self.vm) else None
        l = 0 if (lg and self.lg) else None
        if v is not None or l is not None:
            self._wait(v, l)

    def wait_vm_id(self, oid):
        for i, o in enumerate(self.vm):
            if o["id"] == oid:
                self._wait(vm=len(self.vm) - 1 - i)
                return

    def wait_lg_id(self, oid):
        for i, o in enumerate(self.lg):
            if o["id"] == oid:
                if any(x["smem"] for x in self.lg):
                    self._wait(lg=0)
                else:
                    self._wait(lg=len(self.lg) - 1 - i)
                return

    def _need_waits(self, touched):
        vm = None
        for i, o in enumerate(self.vm):
            if o["dst"] & touched:
                vm = len(self.vm) - 1 - i
        lg = None
        for i, o in enumerate(self.lg):
            if o["dst"] & touched:
                lg = len(self.lg) - 1 - i
        if lg is not None and any(x["smem"] for x in self.lg):
            lg = 0
        if vm is not None and vm > 63:
            vm = None
        if lg is not None and lg > 15:
            lg = None
        if vm is not None or lg is not None:
            self._wait(vm, lg)

    def __call__(self, op, *ops, mods=""):
        ops = [str(o) for o in ops]
        ins = Ins()
        ins.text = op + (" " + ", ".join(ops) if ops else "") + (" " + mods if mods else "")
        ins.rd = set(); ins.wr = set(); ins.srcc = set()
        ins.dpp = ("_dpp" in op) or ("row_" in mods) or ("quad_perm" in mods)
        ins.trans = op.replace("_e32", "").replace("_e64", "") in TRANS
        ins.wide_store = False
        ins.states = 1
        rs = [regs_of(o) for o in ops]
        newvm = newlg = None
        if op.startswith("v_mfma"):
            ins.kind = "mfma"
            ins.wr = rs[0]
            ins.rd = rs[1] | rs[2] | rs[3]
            ins.srcc = rs[3]
        elif op.startswith("v_permlane") and "swap" in op:
            ins.kind = "valu"
            ins.wr = rs[0] | rs[1]
            ins.rd = rs[0] | rs[1]
            ins.dpp = True
        elif op.startswith("v_cmp"):
            ins.kind = "valu"
            ins.wr = rs[0]
            ins.rd = set().union(*rs[1:])
        elif op.startswith("v_"):
            ins.kind = "valu"
            ins.wr = set(rs[0])
            srcs = rs[1:]
            if op.startswith(("v_add_co", "v_sub_co", "v_addc_co", "v_subb_co")):
                ins.wr |= rs[1]
                srcs = rs[2:]
            ins.rd = set().union(*srcs) if srcs else set()
            if op.replace("_e32", "").replace("_e64", "") in RMW_DST or ins.dpp:
                ins.rd |= rs[0]
            if op.startswith("v_cndmask") and len(ops) == 3:
                ins.rd |= {"vcc"}
        elif op.startswith(("buffer_load", "global_load")):
            ins.kind = "vmem"
            lds = (" lds" in " " + mods) or ("_lds_" in op)
            if lds:
                ins.rd = set().union(*rs) | {"m0"}
                newvm = set()
            else:
                ins.wr = rs[0]
                ins.rd = set().union(*rs[1:])
                newvm = set(rs[0])
        elif op.startswith(("buffer_store", "global_store")):
            ins.kind = "vmem"
            ins.rd = set().union(*rs)
            ins.wide_store = op.endswith(("x3", "x4"))
            newvm = set()
        elif op.startswith(("buffer_atomic", "global_atomic")):
            ins.kind = "vmem"
            ins.rd = set().union(*rs)
            newvm = set(rs[0]) if "sc0" in mods else set()
        elif op.startswith(("buffer_inv", "buffer_wbl2")):
            ins.kind = "vmem"
            newvm = set()
        elif op.startswith("ds_read") or op.startswith(("ds_bpermute", "ds_permute", "ds_swizzle")):
            ins.kind = "ds"
            ins.wr = rs[0]
            ins.rd = set().union(*rs[1:])
            newlg = (set(rs[0]), False)
        elif op.startswith("ds_"):
            ins.kind = "ds"
            ins.rd = set().union(*rs)
            newlg = (set(), False)
        elif op.startswith(("s_load", "s_buffer_load", "s_memtime", "s_memrealtime", "s_atomic")):
            ins.kind = "smem"
            ins.wr = rs[0]
            ins.rd = set().union(*rs[1:]) if len(rs) > 1 else set()
            newlg = (set(rs[0]), True)
        elif op.startswith("s_"):
            ins.kind = "salu"
            if op.startswith(("s_cmp", "s_bitcmp")):
                ins.rd = set().union(*rs)
            elif op.startswith(("s_cbranch", "s_branch", "s_barrier", "s_sleep", "s_setprio", "s_endpgm", "s_nop", "s_waitcnt")):
                pass
            else:
                ins.wr = set(rs[0])
                ins.rd = set().union(*rs[1:]) if len(rs) > 1 else set()
                if "saveexec" in op:
                    ins.wr |= {"exec"}
        else:
            raise ValueError("unknown op " + op)

        self._need_waits(ins.rd | ins.wr)

        need = 0
        dist = 0
        for p in reversed(self.hist):
            if dist >= 12:
                break
            req = 0
            if p.kind == "valu":
                vw = {r for r in p.wr if r[0] in "va" and r != "vcc"}
                sw = {r for r in p.wr if r[0] == "s" or r == "vcc"}
                if ins.kind == "mfma" and vw & ins.rd:
                    req = max(req, 2)
                if ins.kind == "valu":
                    if ins.dpp and vw & ins.rd:
                        req = max(req, 2)
                    if op.startswith(("v_readfirstlane", "v_readlane")) and vw & ins.rd:
                        req = max(req, 1)
                    if p.trans and not ins.trans and vw & ins.rd:
                        req = max(req, 1)
                    if sw & ins.rd:
                        req = max(req, 4 if op.startswith(("v_readlane", "v_writelane")) else 2)
                if ins.kind == "vmem" and sw & ins.rd:
                    req = max(req, 5)
                if p.text.startswith("v_dot") and vw & (ins.rd | ins.wr):
                    same = ins.text.split()[0] == p.text.split()[0]
                    if not (same and not (vw & (rs[1] | rs[2]))):
                        req = max(req, 3)
            elif p.kind == "mfma":
                if ins.kind == "mfma":
                    if p.wr & (ins.rd - ins.srcc) or p.wr & (rs[1] | rs[2]):
                        req = max(req, 8)
                    if p.wr & ins.srcc and p.wr != ins.srcc:
                        req = max(req, 6)
                    if p.wr & ins.wr and not (p.wr == ins.srcc):
                        req = max(req, 6)
                elif ins.kind in ("valu", "vmem", "ds"):
                    if p.wr & (ins.rd | ins.wr):
                        req = max(req, 8)
                    if ins.kind == "valu" and p.srcc & ins.wr:
                        req = max(req, 3)
            elif p.kind == "vmem" and p.wide_store:
                if p.rd & ins.wr:
                    req = max(req, 2)
            elif p.kind == "salu" and "m0" in p.wr and "m0" in ins.rd:
                req = max(req, 1)
            need = max(need, req - dist)
            dist += p.states
        self._nop(need)
        self._push(ins)
        self.count[ins.kind] = self.count.get(ins.kind, 0) + 1
        oid = None
        if newvm is not None:
            self.nid += 1
            oid = self.nid
            self.vm.append(dict(id=oid, dst=newvm))
        if newlg is not None:
            self.nid += 1
            oid = self.nid
            self.lg.append(dict(id=oid, dst=newlg[0], smem=newlg[1]))
        return oid

    def barrier(self):
        if self.lg:
            self._wait(lg=0)
        self("s_barrier")

    def text(self):
        return "\n".join(self.lines) + "\n"
```

```python
from asmgen import V, A, S, R, regs_of
from gen import *

MF32 = "v_mfma_f32_16x16x32_bf16"
MF16 = "v_mfma_f32_16x16x16_bf16"
NEG = 0xF149F2CA
SCL = 0x3EB8AA3B
X1P = 8


def load_frags(k, dsts, sbase, sc1=True):
    last = None
    for i, d in enumerate(dsts):
        last = k("buffer_load_dwordx4", R(d, 4), V(vL16B), S(sWS, 4), S(sbase),
                 mods=f"offen offset:{(i & 3) * 1024}" + (" sc1" if sc1 else ""))
        if (i & 3) == 3 and i != len(dsts) - 1:
            k("s_add_u32", S(sbase), S(sbase), 4096)
    return last


def w1_tile_base(g, sdst):
    k = g.k
    k("s_lshl_b32", S(sdst), S(sJ), 2)
    k("s_add_u32", S(sdst), S(sdst), S(sW))
    k("s_mul_i32", S(sdst), S(sdst), 86)
    k("s_lshr_b32", S(sdst), S(sdst), 5)


def phase1(g):
    k = g.k
    MB = [16, 32, 224, 240]
    k("s_lshl_b32", S(sT0), S(sW), 9)
    k("v_lshl_add_u32", V(5), V(vG), 5, S(sT0))
    k("s_mov_b32", S(sT0), hex(WS_MOD))
    for s in range(4):
        for sec in range(2):
            for h in range(2):
                k("buffer_load_dwordx4", V(MB[s] + 8 * sec + 4 * h, 4), V(5), S(sWS, 4), S(sT0),
                  mods=f"offen offset:{s*128 + h*16 + sec*2048} sc1")
    sHEAD = 70
    k("s_lshl_b32", S(sHEAD), S(sJ), 2)
    k("s_add_u32", S(sHEAD), S(sHEAD), S(sW))
    k("s_lshl_b32", S(sT0), S(sHEAD), 14)
    k("s_add_u32", S(sT0), S(sT0), hex(WS_WQKV))
    k("s_add_u32", S(sT0 + 1), S(sT0), hex(32 * 16384))
    k("s_add_u32", S(sT0 + 2), S(sT0), hex(64 * 16384))
    for Sx in range(16):
        for sec in (1, 2, 0):
            k("buffer_load_dwordx4", A((sec * 16 + Sx) * 4, 4), V(vL16B), S(sWS, 4), S(sT0 + sec),
              mods=f"offen offset:{(Sx & 3) * 1024} sc1")
        if (Sx & 3) == 3 and Sx != 15:
            for sec in range(3):
                k("s_add_u32", S(sT0 + sec), S(sT0 + sec), 4096)
    k("s_lshl_b32", S(sT0), S(sW), 12)
    k("s_add_u32", S(sT0), S(sT0), L_A1)
    k("v_add_u32", V(6), S(sT0), V(vL16B))
    k("v_add_u32", V(7), 49152, V(6))
    it = 0
    for rt in range(5):
        for s in range(4):
            f = rt * 4 + s
            T = 48 + (it & 1) * 8
            it += 1
            for d in range(4):
                k("v_pk_fma_f32", V(64 + 8 * f + 2 * d, 2), V(64 + 8 * f + 2 * d, 2), V(MB[s] + 8 + 2 * d, 2),
                  V(MB[s] + 2 * d, 2))
            for d in range(4):
                k("v_cvt_pk_bf16_f32", V(T + d), V(64 + 8 * f + 2 * d), V(64 + 8 * f + 2 * d + 1))
            off = (rt * 16384 if rt < 3 else (rt - 3) * 16384) + s * 1024
            k("ds_write_b128", V(6 if rt < 3 else 7), V(T, 4), mods=f"offset:{off}")
    k("s_lshl_b32", S(sT0), S(sJ), 2)
    k("s_lshl_b32", S(sT0 + 1), S(sP), 1)
    k("s_add_u32", S(sT0), S(sT0), S(sT0 + 1))
    k("s_lshl_b32", S(sT0), S(sT0), 14)
    k("s_lshl_b32", S(sT0 + 1), S(sKH), 13)
    k("s_add_u32", S(sT0), S(sT0), S(sT0 + 1))
    k("s_add_u32", S(sT0), S(sT0), hex(WS_WO))
    k("s_add_u32", S(sT0 + 1), S(sT0), 16384)
    load_frags(k, [256 + 192 + s * 4 for s in range(8)], sT0)
    load_frags(k, [256 + 224 + s * 4 for s in range(8)], sT0 + 1)
    sW1T = 71
    w1_tile_base(g, sW1T)
    k("s_lshl_b32", S(sT0), S(sW1T), 14)
    k("s_add_u32", S(sT0), S(sT0), hex(WS_W1))
    load_frags(k, [192 + s * 4 for s in range(16)], sT0)
    KB, VB, QB, SP, SC, BC, BP, BP1, TM, PP, OA, OP = 56, 66, 76, 80, 84, 88, 92, 96, 100, 112, 116, 120
    k("v_mov_b32", V(TM), hex(NEG))
    k("v_lshlrev_b32", V(TM + 1), 2, V(vG))
    k("v_sub_u32", V(TM + 1), V(vL16), V(TM + 1))
    k("s_cmp_eq_u32", S(sGRP), 0)
    k("s_cselect_b64", S(sT0, 2), -1, 0)
    for r in range(4):
        k("v_subrev_u32", V(TM + 2), r, V(TM + 1))
        k("v_and_b32", V(TM + 3), "0x80000001", V(TM + 2))
        k("v_cmp_ne_u32", "vcc", 0, V(TM + 3))
        k("v_cndmask_b32", V(BC + r), 0, V(TM), "vcc")
        k("v_sub_u32", V(TM + 2), -2, V(TM + 2))
        k("v_and_b32", V(TM + 3), "0x80000001", V(TM + 2))
        k("v_cmp_ne_u32", "vcc", 0, V(TM + 3))
        k("v_cndmask_b32", V(BP + r), 0, V(TM), "vcc")
        k("v_cndmask_b32", V(BP1 + r), V(BP + r), V(TM), S(sT0, 2))
    vO = 124
    k("v_and_b32", V(vO), 1, V(vG))
    k("v_lshlrev_b32", V(vO), 14, V(vO))
    k("v_lshrrev_b32", V(TM + 1), 1, V(vG))
    k("v_lshl_add_u32", V(TM + 1), V(TM + 1), 4, V(vL16))
    k("v_lshl_add_u32", V(vO), V(TM + 1), 4, V(vO))
    sO = 69
    k("s_lshl_b32", S(sO), S(sGRP), 16)
    k("s_lshl_b32", S(sT0), S(sHEAD), 9)
    k("s_add_u32", S(sO), S(sO), S(sT0))
    k("s_add_u32", S(sO), S(sO), hex(WS_O))
    sSCL = 68
    k("s_mov_b32", S(sSCL), hex(SCL))
    k("v_add_u32", V(6), L_A1, V(vL16B))
    k("v_add_u32", V(7), 49152, V(6))
    k.barrier()
    g.stamp()
    XR, AQ, AK, AV = 16, 32, 36, 40
    PF = 3

    def rd(rt, Sx):
        off = (rt * 16384 if rt < 3 else (rt - 3) * 16384) + Sx * 1024
        k("ds_read_b128", V(XR + 4 * (Sx & 3), 4), V(6 if rt < 3 else 7), mods=f"offset:{off}")

    for rt in range(5):
        for Sx in range(PF):
            rd(rt, Sx)
        for Sx in range(16):
            if Sx + PF < 16:
                rd(rt, Sx + PF)
            x = V(XR + 4 * (Sx & 3), 4)
            k(MF32, V(AK, 4), A((16 + Sx) * 4, 4), x, V(AK, 4) if Sx else 0)
            k(MF32, V(AV, 4), x, A((32 + Sx) * 4, 4), V(AV, 4) if Sx else 0)
            if rt:
                k(MF32, V(AQ, 4), A(Sx * 4, 4), x, V(AQ, 4) if Sx else 0)
        for h in range(2):
            k("v_cvt_pk_bf16_f32", V(KB + 2 * rt + h), V(AK + 2 * h), V(AK + 2 * h + 1))
            k("v_cvt_pk_bf16_f32", V(VB + 2 * rt + h), V(AV + 2 * h), V(AV + 2 * h + 1))
        if rt == 0:
            continue
        for h in range(2):
            k("v_cvt_pk_bf16_f32", V(QB + h), V(AQ + 2 * h), V(AQ + 2 * h + 1))
        k(MF16, V(SP, 4), V(KB + 2 * (rt - 1), 2), V(QB, 2), 0)
        k(MF16, V(SC, 4), V(KB + 2 * rt, 2), V(QB, 2), 0)
        for r in range(4):
            k("v_fma_f32", V(SP + r), S(sSCL), V(SP + r), V((BP1 if rt == 1 else BP) + r))
        for r in range(4):
            k("v_fma_f32", V(SC + r), S(sSCL), V(SC + r), V(BC + r))
        M, T1 = TM + 4, TM + 5
        k("v_max3_f32", V(M), V(SP), V(SP + 1), V(SP + 2))
        k("v_max3_f32", V(M), V(M), V(SP + 3), V(SP + 4))
        k("v_max3_f32", V(M), V(M), V(SP + 5), V(SP + 6))
        k("v_max_f32", V(M), V(M), V(SP + 7))
        g.allred_g(M, T1, "v_max_f32")
        for i in range(8):
            k("v_sub_f32", V(SP + i), V(SP + i), V(M))
        for i in range(8):
            k("v_exp_f32", V(SP + i), V(SP + i))
        k("v_add_f32", V(M), V(SP), V(SP + 1))
        for i in range(2, 8):
            k("v_add_f32", V(M), V(M), V(SP + i))
        g.allred_g(M, T1, "v_add_f32")
        k("v_rcp_f32", V(M), V(M))
        for i in range(8):
            k("v_mul_f32", V(SP + i), V(SP + i), V(M))
        for i in range(4):
            k("v_cvt_pk_bf16_f32", V(PP + i), V(SP + 2 * i), V(SP + 2 * i + 1))
        k(MF32, V(OA, 4), V(VB + 2 * (rt - 1), 4), V(PP, 4), 0)
        ob = OP + (0 if rt & 1 else 2)
        for h in range(2):
            k("v_cvt_pk_bf16_f32", V(ob + h), V(OA + 2 * h), V(OA + 2 * h + 1))
        if not (rt & 1):
            k("v_permlane16_swap_b32", V(OP), V(OP + 2))
            k("v_permlane16_swap_b32", V(OP + 1), V(OP + 3))
            k("buffer_store_dwordx4", V(OP, 4), V(vO), S(sWS, 4), S(sO), mods="offen sc1")
            if rt == 2:
                k("s_add_u32", S(sO), S(sO), 32768)
    g.stamp()
    g.setflag(WS_F1, 5, 6)
    k("s_lshl_b32", S(sT0), S(sW1T), 14)
    k("s_add_u32", S(sT0), S(sT0), hex(WS_W1 + 16384))
    load_frags(k, [256 + s * 4 for s in range(32)], sT0)


def pair_exchange(g, ACC, KEEP, SEND, lxch):
    k = g.k
    for pr in range(2):
        a0, a1 = ACC + 16 * pr, ACC + 16 * pr + 8
        for i in range(8):
            k("v_cndmask_b32", V(KEEP + 8 * pr + i), V(a0 + i), V(a1 + i), S(sKHM, 2))
            k("v_cndmask_b32", V(SEND + 8 * pr + i), V(a1 + i), V(a0 + i), S(sKHM, 2))
    k("s_lshl_b32", S(sT0), S(sW), 12)
    k("s_add_u32", S(sT0), S(sT0), lxch)
    k("v_add_u32", V(5), S(sT0), V(vL16B))
    k("s_xor_b32", S(sT0), S(sT0), 8192)
    k("v_add_u32", V(6), S(sT0), V(vL16B))
    for q in range(4):
        k("ds_write_b128", V(5), V(SEND + 4 * q, 4), mods=f"offset:{q*1024}")
    k.barrier()
    for q in range(4):
        k("ds_read_b128", V(ACC + 4 * q, 4), V(6), mods=f"offset:{q*1024}")
    for i in range(16):
        k("v_add_f32", V(KEEP + i), V(KEEP + i), V(ACC + i))


def row_col_soff(g, sdst, e):
    k = g.k
    k("s_lshl_b32", S(sdst), S(sGRP), 2)
    k("s_add_u32", S(sdst), S(sdst), S(sKH))
    if e:
        k("s_add_u32", S(sdst), S(sdst), 2)
    k("s_lshl_b32", S(sdst), S(sdst), 14)
    k("s_lshl_b32", S(sdst + 1), S(sJ), 7)
    k("s_add_u32", S(sdst), S(sdst), S(sdst + 1))
    k("s_lshl_b32", S(sdst + 1), S(sP), 6)
    k("s_add_u32", S(sdst), S(sdst), S(sdst + 1))


def load_gate(g, dst, col0):
    k = g.k
    k("v_lshlrev_b32", V(5), 5, V(vG))
    k("s_lshl_b32", S(sT0), S(sJ), 8)
    k("s_lshl_b32", S(sT0 + 1), S(sP), 7)
    k("s_add_u32", S(sT0), S(sT0), S(sT0 + 1))
    k("s_add_u32", S(sT0), S(sT0), hex(WS_MOD + col0 * 4))
    k("buffer_load_dwordx4", V(dst, 4), V(5), S(sWS, 4), S(sT0), mods="offen sc1")
    k("buffer_load_dwordx4", V(dst + 4, 4), V(5), S(sWS, 4), S(sT0), mods="offen offset:16 sc1")


def phase2(g):
    k = g.k
    XRES, GA = 100, 108
    vRC = 116
    k("v_lshlrev_b32", V(vRC), 10, V(vL16))
    k("v_lshl_add_u32", V(vRC), V(vG), 4, V(vRC))
    for e in range(2):
        row_col_soff(g, sT0, e)
        k("buffer_load_dwordx4", V(XRES + 4 * e, 4), V(vRC), S(sX, 4), S(sT0), mods="offen")
    load_gate(g, GA, 1024)
    g.poll_group(WS_F1, 5, 6)
    g.stamp()
    k("s_lshl_b32", S(sT0), S(sGRP), 16)
    k("s_lshl_b32", S(sT0 + 1), S(sW), 14)
    k("s_add_u32", S(sT0), S(sT0), S(sT0 + 1))
    k("s_add_u32", S(sT0), S(sT0), hex(WS_O))
    k("s_add_u32", S(sT0 + 1), S(sT0 + 1), L_OT)
    for i in range(16):
        if (i & 3) == 0:
            k("s_mov_b32", "m0", S(sT0 + 1))
        k("buffer_load_dwordx4", V(vL16B), S(sWS, 4), S(sT0), mods=f"offen offset:{(i&3)*1024} sc1 lds")
        if (i & 3) == 3 and i != 15:
            k("s_add_u32", S(sT0), S(sT0), 4096)
            k("s_add_u32", S(sT0 + 1), S(sT0 + 1), 4096)
    k("s_lshl_b32", S(sT0), S(sKH), 13)
    k("s_add_u32", S(sT0), S(sT0), L_OT)
    k("v_add_u32", V(7), S(sT0), V(vL16B))
    k.wait_all()
    k.barrier()
    XR, ACC, KEEP, SEND = 16, 32, 64, 80
    PF = 3
    seq = [(rt, s) for rt in range(4) for s in range(8)]

    def rd(n):
        rt, s = seq[n]
        k("ds_read_b128", V(XR + 4 * (n & 3), 4), V(7), mods=f"offset:{rt*16384 + s*1024}")
    for n in range(PF):
        rd(n)
    for n, (rt, s) in enumerate(seq):
        if n + PF < len(seq):
            rd(n + PF)
        x = V(XR + 4 * (n & 3), 4)
        for i in range(2):
            acc = V(ACC + 8 * rt + 4 * i, 4)
            k(MF32, acc, A(192 + (i * 8 + s) * 4, 4), x, acc if s else 0)
    pair_exchange(g, ACC, KEEP, SEND, L_XCH)
    k("v_lshrrev_b32", V(6), 1, V(vG))
    k("v_lshlrev_b32", V(6), 2, V(6))
    k("v_lshl_add_u32", V(6), V(vL16), 7, V(6))
    k("s_mov_b32", S(sT0 + 4), "0x3f803f80")
    for e in range(2):
        T = 32 + 8 * e
        for d in range(4):
            k("v_lshlrev_b32", V(T + 2 * d), 16, V(XRES + 4 * e + d))
            k("v_and_b32", V(T + 2 * d + 1), "0xffff0000", V(XRES + 4 * e + d))
        for i in range(8):
            k("v_fmac_f32", V(T + i), V(GA + i), V(KEEP + 8 * e + i))
        for d in range(4):
            k("v_cvt_pk_bf16_f32", V(X1P + 4 * e + d), V(T + 2 * d), V(T + 2 * d + 1))
        k("s_lshl_b32", S(sT0), S(sGRP), 2)
        k("s_add_u32", S(sT0), S(sT0), S(sKH))
        if e:
            k("s_add_u32", S(sT0), S(sT0), 2)
        k("s_lshl_b32", S(sT0 + 1), S(sJ), 1)
        k("s_add_u32", S(sT0 + 1), S(sT0 + 1), S(sP))
        k("s_lshl_b32", S(sT0 + 2), S(sT0), 4)
        k("s_add_u32", S(sT0 + 2), S(sT0 + 2), S(sT0 + 1))
        k("s_lshl_b32", S(sT0 + 2), S(sT0 + 2), 10)
        k("s_add_u32", S(sT0 + 2), S(sT0 + 2), hex(WS_X1))
        k("buffer_store_dwordx4", V(X1P + 4 * e, 4), V(vL16B), S(sWS, 4), S(sT0 + 2), mods="offen sc1")
        sm, sq = 48 + 2 * e, 49 + 2 * e
        for d in range(4):
            k("v_dot2_f32_bf16", V(sm), V(X1P + 4 * e + d), S(sT0 + 4), V(sm) if d else 0)
            k("v_dot2_f32_bf16", V(sq), V(X1P + 4 * e + d), V(X1P + 4 * e + d), V(sq) if d else 0)
        k("v_permlane32_swap_b32", V(sm), V(sq))
        k("v_add_f32", V(sm), V(sm), V(sq))
        k("v_mov_b32", V(sq), V(sm))
        k("v_permlane16_swap_b32", V(sq), V(sm))
        k("v_add_f32", V(sm), V(sm), V(sq))
        k("s_lshl_b32", S(sT0 + 2), S(sT0), 11)
        k("s_lshl_b32", S(sT0 + 3), S(sT0 + 1), 3)
        k("s_add_u32", S(sT0 + 2), S(sT0 + 2), S(sT0 + 3))
        k("s_add_u32", S(sT0 + 2), S(sT0 + 2), hex(WS_STATS))
        k("buffer_store_dword", V(sm), V(6), S(sWS, 4), S(sT0 + 2), mods="offen sc1")
    g.stamp()
    g.setflag(WS_F2, 5, 6)


def phase3(g):
    k = g.k
    MB = 64
    k("s_lshl_b32", S(sT0), S(sW), 9)
    k("v_lshl_add_u32", V(5), V(vG), 5, S(sT0))
    k("s_mov_b32", S(sT0), hex(WS_MOD + 1536 * 4))
    for s in range(4):
        for sec in range(2):
            for h in range(2):
                k("buffer_load_dwordx4", V(MB + 16 * s + 8 * sec + 4 * h, 4), V(5), S(sWS, 4), S(sT0),
                  mods=f"offen offset:{s*128 + h*16 + sec*2048} sc1")
    g.poll_group(WS_F2, 5, 6)
    g.stamp()
    ST, XRAW, AB = 16, 128, 48
    k("v_lshlrev_b32", V(5), 7, V(vL16))
    k("v_lshl_add_u32", V(5), V(vG), 5, V(5))
    k("s_lshl_b32", S(sT0), S(sGRP), 13)
    k("s_add_u32", S(sT0), S(sT0), hex(WS_STATS))
    for rt in range(4):
        for h in range(2):
            k("buffer_load_dwordx4", V(ST + 8 * rt + 4 * h, 4), V(5), S(sWS, 4), S(sT0),
              mods=f"offen offset:{(rt & 1)*2048 + h*16} sc1")
        if rt == 1:
            k("s_add_u32", S(sT0), S(sT0), 4096)
    k("s_lshl_b32", S(sT0), S(sGRP), 16)
    k("s_lshl_b32", S(sT0 + 1), S(sW), 12)
    k("s_add_u32", S(sT0), S(sT0), S(sT0 + 1))
    k("s_add_u32", S(sT0), S(sT0), hex(WS_X1))
    for rt in range(4):
        for s in range(4):
            k("buffer_load_dwordx4", V(XRAW + 4 * (rt * 4 + s), 4), V(vL16B), S(sWS, 4), S(sT0),
              mods=f"offen offset:{s*1024} sc1")
        if rt < 3:
            k("s_add_u32", S(sT0), S(sT0), 16384)
    for rt in range(4):
        b = ST + 8 * rt
        for i in (2, 4, 6):
            k("v_add_f32", V(b), V(b), V(b + i))
            k("v_add_f32", V(b + 1), V(b + 1), V(b + 1 + i))
        g.allred_g(b, b + 2, "v_add_f32")
        g.allred_g(b + 1, b + 2, "v_add_f32")
        g.ln_ab(b, b + 1, AB + 2 * rt, 1)
    k("s_lshl_b32", S(sT0), S(sW), 12)
    k("s_add_u32", S(sT0), S(sT0), L_A2)
    k("v_add_u32", V(6), S(sT0), V(vL16B))
    it = 0
    for rt in range(4):
        for s in range(4):
            f = rt * 4 + s
            T = 16 + (it & 1) * 16
            it += 1
            for d in range(4):
                k("v_lshlrev_b32", V(T + 2 * d), 16, V(XRAW + 4 * f + d))
                k("v_and_b32", V(T + 2 * d + 1), "0xffff0000", V(XRAW + 4 * f + d))
            for d in range(4):
                k("v_pk_fma_f32", V(T + 2 * d, 2), V(T + 2 * d, 2), V(AB + 2 * rt, 2), V(AB + 2 * rt, 2),
                  mods="op_sel:[0,0,1] op_sel_hi:[1,0,1]")
            for d in range(4):
                k("v_pk_fma_f32", V(T + 2 * d, 2), V(T + 2 * d, 2), V(MB + 16 * s + 8 + 2 * d, 2),
                  V(MB + 16 * s + 2 * d, 2))
            for d in range(4):
                k("v_cvt_pk_bf16_f32", V(T + 8 + d), V(T + 2 * d), V(T + 2 * d + 1))
            k("ds_write_b128", V(6), V(T + 8, 4), mods=f"offset:{rt*16384 + s*1024}")
    g.w2reg = lambda i, s: (256 + 128 + (i * 22 + s) * 4) if (i * 22 + s) < 32 else (128 + (i * 22 + s - 32) * 4)
    k("s_lshl_b32", S(sT0), S(sJ), 2)
    k("s_lshl_b32", S(sT0 + 1), S(sP), 1)
    k("s_add_u32", S(sT0), S(sT0), S(sT0 + 1))
    k("s_mul_i32", S(sT0), S(sT0), hex(HRT))
    k("s_mul_i32", S(sT0 + 1), S(sKH), 22 * 1024)
    k("s_add_u32", S(sT0), S(sT0), S(sT0 + 1))
    k("s_add_u32", S(sT0), S(sT0), hex(WS_W2))
    k("s_add_u32", S(sT0 + 1), S(sT0), hex(HRT))
    for i in range(2):
        load_frags(k, [g.w2reg(i, s) for s in range(22)], sT0 + i)
    vH = 56
    k("v_and_b32", V(vH), 1, V(vG))
    k("v_mul_u32_u24", V(vH), hex(HRT), V(vH))
    k("v_lshrrev_b32", V(5), 1, V(vG))
    k("v_lshl_add_u32", V(5), V(5), 4, V(vL16))
    k("v_lshl_add_u32", V(vH), V(5), 4, V(vH))
    sH = 69
    k("s_mul_i32", S(sH), S(sGRP), hex(4 * HRT))
    k("s_lshl_b32", S(sT0), S(71), 9)
    k("s_add_u32", S(sH), S(sH), S(sT0))
    k("s_add_u32", S(sH), S(sH), hex(WS_H))
    sNL = 68
    k("s_mov_b32", S(sNL), hex(NLOG2E))
    k("v_add_u32", V(7), L_A2, V(vL16B))
    k.barrier()
    g.stamp()
    XR, ACC, HP, TM = 16, 32, 44, 60
    W1R = [192, 256, 256 + 64]
    PF = 3

    def rd(rt, Sx):
        k("ds_read_b128", V(XR + 4 * (Sx & 3), 4), V(7), mods=f"offset:{rt*16384 + Sx*1024}")
    for rt in range(4):
        for Sx in range(PF):
            rd(rt, Sx)
        for Sx in range(16):
            if Sx + PF < 16:
                rd(rt, Sx + PF)
            x = V(XR + 4 * (Sx & 3), 4)
            for t in range(3):
                k(MF32, V(ACC + 4 * t, 4), R(W1R[t] + 4 * Sx, 4), x, V(ACC + 4 * t, 4) if Sx else 0)
        for i in range(12):
            k("v_mul_f32", V(TM + i), S(sNL), V(ACC + i))
        for i in range(12):
            k("v_exp_f32", V(TM + i), V(TM + i))
        for i in range(12):
            k("v_add_f32", V(TM + i), 1.0, V(TM + i))
        for i in range(12):
            k("v_rcp_f32", V(TM + i), V(TM + i))
        for i in range(12):
            k("v_mul_f32", V(TM + i), V(TM + i), V(ACC + i))
        for t in range(3):
            for h in range(2):
                k("v_cvt_pk_bf16_f32", V(HP + 4 * t + 2 * (rt & 1) + h), V(TM + 4 * t + 2 * h), V(TM + 4 * t + 2 * h + 1))
        if rt & 1:
            for t in range(3):
                k("v_permlane16_swap_b32", V(HP + 4 * t), V(HP + 4 * t + 2))
                k("v_permlane16_swap_b32", V(HP + 4 * t + 1), V(HP + 4 * t + 3))
                k("buffer_store_dwordx4", V(HP + 4 * t, 4), V(vH), S(sWS, 4), S(sH), mods=f"offen offset:{t*512} sc1")
            if rt == 1:
                k("s_add_u32", S(sH), S(sH), hex(2 * HRT))
    g.stamp()
    g.setflag(WS_F3, 5, 6)


def phase4(g):
    k = g.k
    GB = 100
    load_gate(g, GB, 2560)
    srd(k, sTA, 32, 2048 * 1024)
    g.poll_group(WS_F3, 5, 6)
    g.stamp()
    sFS, sHG = 68, 69
    k("s_mul_i32", S(sFS), S(sW), 11)
    k("s_min_u32", S(sFS), S(sFS), 32)
    k("s_lshl_b32", S(sFS), S(sFS), 10)
    k("s_mul_i32", S(sHG), S(sGRP), hex(4 * HRT))
    k("s_add_u32", S(sHG), S(sHG), S(sFS))
    k("s_add_u32", S(sHG), S(sHG), hex(WS_H))

    def dma(rt):
        slot = rt % 3
        k("s_add_u32", S(sT0), S(sHG), hex(rt * HRT))
        k("s_add_u32", S(sT0 + 1), S(sFS), hex(L_H + slot * HRT))
        last = None
        for i in range(11):
            if (i & 3) == 0:
                k("s_mov_b32", "m0", S(sT0 + 1))
            last = k("buffer_load_dwordx4", V(vL16B), S(sWS, 4), S(sT0), mods=f"offen offset:{(i&3)*1024} sc1 lds")
            if (i & 3) == 3:
                k("s_add_u32", S(sT0), S(sT0), 4096)
                k("s_add_u32", S(sT0 + 1), S(sT0 + 1), 4096)
        return last
    ids = [dma(0), dma(1), dma(2)]
    VA = 108
    k("s_mul_i32", S(sT0), S(sKH), 22 * 1024)
    k("v_add_u32", V(VA), S(sT0), V(vL16B))
    k("v_add_u32", V(VA + 1), hex(HRT), V(VA))
    k("v_add_u32", V(VA + 2), hex(2 * HRT), V(VA))
    XR, ACC, KEEP, SEND = 16, 32, 64, 80
    PF = 3
    for rt in range(4):
        k.wait_vm_id(ids[rt])
        k.barrier()
        if rt == 1:
            ids.append(dma(3))
        va = V(VA + rt % 3)

        def rd(s):
            k("ds_read_b128", V(XR + 4 * (s & 3), 4), va, mods=f"offset:{L_H + s*1024}")
        for s in range(PF):
            rd(s)
        for s in range(22):
            if s + PF < 22:
                rd(s + PF)
            x = V(XR + 4 * (s & 3), 4)
            skip = None
            if s == 21:
                k._need_waits(regs_of(x) | regs_of(R(g.w2reg(0, s), 4)) | regs_of(R(g.w2reg(1, s), 4)))
                skip = k.newlabel("L_skip")
                k("s_cmp_eq_u32", S(sKH), 1)
                k("s_cbranch_scc1", skip)
            for i in range(2):
                acc = V(ACC + 8 * rt + 4 * i, 4)
                k(MF32, acc, R(g.w2reg(i, s), 4), x, acc if s else 0)
            if skip:
                k.label(skip)
    pair_exchange(g, ACC, KEEP, SEND, L_XCH2)
    vRC = 116
    k("v_lshlrev_b32", V(vRC), 10, V(vL16))
    k("v_lshl_add_u32", V(vRC), V(vG), 4, V(vRC))
    for e in range(2):
        T = 32 + 8 * e
        for d in range(4):
            k("v_lshlrev_b32", V(T + 2 * d), 16, V(X1P + 4 * e + d))
            k("v_and_b32", V(T + 2 * d + 1), "0xffff0000", V(X1P + 4 * e + d))
        for i in range(8):
            k("v_fmac_f32", V(T + i), V(GB + i), V(KEEP + 8 * e + i))
        for d in range(4):
            k("v_cvt_pk_bf16_f32", V(48 + 4 * e + d), V(T + 2 * d), V(T + 2 * d + 1))
        row_col_soff(g, sT0, e)
        k("buffer_store_dwordx4", V(48 + 4 * e, 4), V(vRC), S(sTA, 4), S(sT0), mods="offen")
```

```python
import sys
sys.path.insert(0, "dev")
from asmgen import Asm, V, A, S, R

KNAME = "adaLN_cond__sliding_local_dilated__dense_activation_silu__prompt_kernel"

WS_EPOCH = 0x0
WS_F0 = 0x400
WS_F1 = 0x1000
WS_F2 = 0x2000
WS_F3 = 0x3000
WS_MOD = 0x4000
WS_STATS = 0x8000
WS_WQKV = 0x100000
WS_WO = 0x280000
WS_W1 = 0x300000
WS_W2 = 0x480000
WS_O = 0x600000
WS_X1 = 0x800000
WS_H = 0xA00000
WS_DBG = 0x1000000
WS_SIZE = 0x1100000
HRT = 43 * 1024

L_P = 0
L_MODRED = 32768
L_ST1 = 33792
L_A1 = 81920
L_OT = 0
L_XCH = 65536
L_A2 = 81920
L_H = 0
L_XCH2 = 147456
LDS_BYTES = 163840

TAGC = 0x9E3779B8
LOG2E = 0x3FB8AA3B
NLOG2E = 0xBFB8AA3B
SPIN_MAX = 4000

sWG, sW = 2, 3
sWS, sX, sTA, sTB, sTC, sTD = 4, 8, 12, 40, 44, 48
sTAG, sFAIL, sGRP, sJ = 38, 39, 52, 53
sKH, sP = 54, 55
sKHM = 56
sT0 = 58
STAMPS = [80, 82, 84, 86, 88, 90, 92, 72, 74, 76, 94, 96, 98]

vLANE, vL16, vG, vL16B = 1, 2, 3, 4


def srd(k, d, ptr, nbytes):
    k("s_mov_b32", S(d), S(ptr))
    k("s_and_b32", S(d + 1), S(ptr + 1), "0xffff")
    k("s_mov_b32", S(d + 2), hex(nbytes))
    k("s_mov_b32", S(d + 3), "0x00020000")


class Gen:
    def __init__(self, stop=99, stamps=False):
        self.k = Asm()
        self.stop = stop
        self.stamps = stamps
        self.nst = 0

    def stamp(self, grp="main"):
        import os
        if grp != os.environ.get("SGRP", "main") and grp != "all":
            return
        if self.stamps and self.nst < len(STAMPS):
            import os
            self.k("s_memtime" if os.environ.get("CYC") else "s_memrealtime", S(STAMPS[self.nst], 2))
            self.nst += 1

    def poll(self, voff, soff_sgpr, n, vtmp):
        k = self.k
        lab = k.newlabel("L_poll")
        done = k.newlabel("L_pdone")
        k.wait_all()
        k("s_mov_b32", S(sT0), 0)
        k.label(lab)
        op = {1: "buffer_load_dword", 4: "buffer_load_dwordx4"}[n]
        k(op, V(vtmp, n), V(voff), S(sWS, 4), S(soff_sgpr), mods="offen sc1")
        k("s_add_u32", S(sT0), S(sT0), 1)
        k("s_add_u32", S(sT0 + 1), S(sT0), S(sFAIL))
        if n == 4:
            for i in range(4):
                k("v_xor_b32", V(vtmp + i), S(sTAG), V(vtmp + i))
            k("v_or3_b32", V(vtmp), V(vtmp), V(vtmp + 1), V(vtmp + 2))
            k("v_or_b32", V(vtmp), V(vtmp), V(vtmp + 3))
            k("v_cmp_ne_u32", "vcc", 0, V(vtmp))
        else:
            k("v_cmp_ne_u32", "vcc", S(sTAG), V(vtmp))
        k("s_cmp_gt_u32", S(sT0 + 1), SPIN_MAX)
        k("s_cbranch_scc1", done + "f")
        k("s_cbranch_vccnz", lab)
        k("s_branch", done)
        k.label(done + "f")
        k("s_mov_b32", S(sFAIL), SPIN_MAX)
        k.label(done)

    def setflag(self, base, vtmp, vaddr):
        k = self.k
        k.wait_all(lg=False)
        k("s_lshl_b32", S(sT0), S(sGRP), 7)
        k("s_lshl_b32", S(sT0 + 1), S(sJ), 4)
        k("s_lshl_b32", S(sT0 + 2), S(sW), 2)
        k("s_add_u32", S(sT0), S(sT0), S(sT0 + 1))
        k("s_add_u32", S(sT0), S(sT0), S(sT0 + 2))
        k("s_add_u32", S(sT0), S(sT0), hex(base))
        k("v_mov_b32", V(vtmp), S(sTAG))
        k("v_mov_b32", V(vaddr), 0)
        k("s_mov_b64", "exec", 1)
        k("buffer_store_dword", V(vtmp), V(vaddr), S(sWS, 4), S(sT0), mods="offen sc1")
        k("s_mov_b64", "exec", -1)

    def poll_group(self, base, vtmp, vaddr):
        k = self.k
        k("s_lshl_b32", S(sT0 + 2), S(sGRP), 7)
        k("s_add_u32", S(sT0 + 2), S(sT0 + 2), hex(base))
        k("v_and_b32", V(vaddr), 31, V(vLANE))
        k("v_lshlrev_b32", V(vaddr), 2, V(vaddr))
        self.poll(vaddr, sT0 + 2, 1, vtmp)

    def allred_g(self, v, t, op):
        k = self.k
        k("v_mov_b32", V(t), V(v))
        k("v_permlane32_swap_b32", V(t), V(v))
        k(op, V(v), V(v), V(t))
        k("v_mov_b32", V(t), V(v))
        k("v_permlane16_swap_b32", V(t), V(v))
        k(op, V(v), V(v), V(t))

    def round_bf16(self, v):
        k = self.k
        k("v_cvt_pk_bf16_f32", V(v), V(v), V(v))
        k("v_and_b32", V(v), "0xffff0000", V(v))

    def prologue(self):
        k = self.k
        k("s_cmp_ge_u32", S(sWG), 256)
        k("s_cbranch_scc1", "L_end")
        k("s_load_dwordx16", S(16, 16), S(0, 2), 0)
        k("s_load_dwordx4", S(32, 4), S(0, 2), 64)
        k("s_load_dwordx2", S(36, 2), S(0, 2), 80)
        self.stamp("all")
        k("s_getpc_b64", S(sT0, 2))
        k.raw("L_pc:")
        k("s_lshr_b32", S(sT0 + 2), S(sWG), 3)
        k("s_and_b32", S(sT0 + 2), S(sT0 + 2), 15)
        k("s_lshl_b32", S(sT0 + 2), S(sT0 + 2), 12)
        k("v_lshlrev_b32", V(5), 4, V(0))
        k("v_add_u32", V(5), S(sT0 + 2), V(5))
        k("v_min_u32", V(5), "L_code_end-L_pc-16", V(5))
        k("global_load_dwordx4", V(252, 4), V(5), S(sT0, 2))
        k("v_lshrrev_b32", V(5), 6, V(0))
        k("v_and_b32", V(vLANE), 63, V(0))
        k("v_readfirstlane_b32", S(sW), V(5))
        k("v_and_b32", V(vL16), 15, V(0))
        k("v_bfe_u32", V(vG), V(0), 4, 2)
        k("v_lshlrev_b32", V(vL16B), 4, V(vLANE))
        k("s_and_b32", S(sT0), S(sWG), 7)
        k("s_lshr_b32", S(sT0 + 1), S(sWG), 3)
        k("s_and_b32", S(sJ), S(sT0 + 1), 7)
        k("s_lshr_b32", S(sT0 + 1), S(sT0 + 1), 3)
        k("s_lshl_b32", S(sGRP), S(sT0), 2)
        k("s_add_u32", S(sGRP), S(sGRP), S(sT0 + 1))
        k("s_and_b32", S(sP), S(sW), 1)
        k("s_lshr_b32", S(sKH), S(sW), 1)
        k("s_cmp_eq_u32", S(sKH), 1)
        k("s_cselect_b64", S(sKHM, 2), -1, 0)
        k("s_mov_b32", S(sFAIL), 0)
        srd(k, sWS, 36, WS_SIZE)
        k("s_load_dword", S(sTAG), S(36, 2), WS_EPOCH)
        srd(k, sTA, 30, 512 * 6144)
        srd(k, sTB, 28, 1024)
        srd(k, sX, 16, 2048 * 1024)
        self.stamp("p0")

    def pblock_params(self, rnd, srdreg, sb):
        k = self.k
        t = sT0
        k("s_lshl_b32", S(t), S(sWG), 2)
        k("s_add_u32", S(t), S(t), S(sW))
        k("s_lshr_b32", S(t + 1), S(t), 3)
        k("s_and_b32", S(t + 2), S(t), 7)
        if rnd == 0:
            k("s_mul_i32", S(t + 3), S(t + 1), 3)
            k("s_add_u32", S(t + 3), S(t + 3), S(t + 2))
            k("s_mul_i32", S(t + 4), S(t + 1), 5)
            k("s_add_u32", S(t + 4), S(t + 4), S(t + 2))
            k("s_sub_u32", S(t + 4), S(t + 4), 3)
            k("s_mov_b32", S(sb + 5), 1)
            k("s_cmp_lt_u32", S(t + 2), 3)
            k("s_cselect_b32", S(t + 5), 1, 0)
        else:
            k("s_add_u32", S(t + 4), S(t + 1), 640)
            k("s_add_u32", S(t + 3), S(t + 1), 768)
            k("s_cmp_eq_u32", S(t + 2), 6)
            k("s_cselect_b32", S(t + 4), S(t + 3), S(t + 4))
            k("s_cmp_ge_u32", S(t + 2), 6)
            k("s_cselect_b32", S(sb + 5), 1, 0)
            k("s_cmp_lt_u32", S(t + 4), 824)
            k("s_cselect_b32", S(sb + 5), S(sb + 5), 0)
            k("s_min_u32", S(t + 4), S(t + 4), 823)
            k("s_mov_b32", S(t + 5), 0)
            k("s_mov_b32", S(t + 3), 0)
        o = t + 4
        k("s_cmp_ge_u32", S(o), 128)
        k("s_cselect_b32", S(t + 6), 1, 0)
        k("s_cmp_ge_u32", S(o), 480)
        k("s_cselect_b32", S(t + 6), 2, S(t + 6))
        k("s_cmp_eq_u32", S(t + 5), 1)
        k("s_cselect_b32", S(t + 6), 3, S(t + 6))
        k("s_sub_u32", S(t + 7), S(o), 128)
        k("s_cmp_eq_u32", S(t + 6), 1)
        k("s_cselect_b32", S(t + 8), S(t + 7), S(o))
        k("s_sub_u32", S(t + 7), S(o), 480)
        k("s_cmp_eq_u32", S(t + 6), 2)
        k("s_cselect_b32", S(t + 8), S(t + 7), S(t + 8))
        k("s_cmp_eq_u32", S(t + 6), 3)
        k("s_cselect_b32", S(t + 8), S(t + 3), S(t + 8))
        k("s_and_b32", S(t + 9), S(t + 8), 15)
        k("s_lshr_b32", S(t + 10), S(t + 8), 4)
        k("s_lshr_b32", S(t + 11), S(t + 8), 3)
        k("s_and_b32", S(t + 12), S(t + 8), 7)
        k("s_cmp_eq_u32", S(t + 6), 2)
        k("s_cselect_b32", S(t + 9), S(t + 11), S(t + 9))
        k("s_cselect_b32", S(t + 10), S(t + 12), S(t + 10))
        k("s_cselect_b32", S(sb + 3), 43, 16)
        k("s_lshl_b32", S(sb + 3), S(sb + 3), 10)
        k("s_mov_b32", S(sb), 1024)
        k("s_mov_b32", S(srdreg), S(20))
        k("s_mov_b32", S(srdreg + 1), S(21))
        k("s_mov_b32", S(srdreg + 2), hex(512 * 1024))
        k("s_mov_b32", S(t + 13), hex(WS_WO))
        k("s_mov_b32", S(sb + 4), 16)
        for ty, stride, ptr, nb, dst, cm in ((1, 2752, 24, 512 * 2752, WS_W1, 8), (2, 1024, 26, 1376 * 1024, WS_W2, 16),
                                             (3, 3072, 18, 512 * 3072, WS_WQKV, 8)):
            if ty == 3 and rnd == 1:
                continue
            k("s_cmp_eq_u32", S(t + 6), ty)
            k("s_cselect_b32", S(sb), hex(stride), S(sb))
            k("s_cselect_b32", S(srdreg), S(ptr), S(srdreg))
            k("s_cselect_b32", S(srdreg + 1), S(ptr + 1), S(srdreg + 1))
            k("s_cselect_b32", S(srdreg + 2), hex(nb), S(srdreg + 2))
            k("s_cselect_b32", S(t + 13), hex(dst), S(t + 13))
            k("s_cselect_b32", S(sb + 4), cm, S(sb + 4))
        k("s_and_b32", S(srdreg + 1), S(srdreg + 1), "0xffff")
        k("s_mov_b32", S(srdreg + 3), "0x00020000")
        k("s_mul_i32", S(sb + 1), S(t + 9), S(sb))
        k("s_lshl_b32", S(sb + 1), S(sb + 1), 5)
        k("s_lshl_b32", S(t + 7), S(t + 10), 7)
        k("s_add_u32", S(sb + 1), S(sb + 1), S(t + 7))
        k("s_mul_i32", S(sb + 2), S(t + 10), S(sb + 3))
        k("s_lshl_b32", S(sb + 2), S(sb + 2), 2)
        k("s_lshl_b32", S(t + 7), S(t + 9), 10)
        k("s_add_u32", S(sb + 2), S(sb + 2), S(t + 7))
        k("s_add_u32", S(sb + 2), S(sb + 2), S(t + 13))

    def phase0(self):
        k = self.k
        PB0, PB1 = 72, 94
        k("s_and_b32", S(sT0), S(sWG), 7)
        k("s_mul_i32", S(sT0), S(sT0), 24)
        k("s_lshr_b32", S(sT0 + 1), S(sWG), 3)
        k("s_add_u32", S(78), S(sT0), S(sT0 + 1))
        k("s_cmp_lt_u32", S(sWG), 192)
        k("s_cselect_b32", S(78), S(78), 0)
        k("s_cselect_b32", S(79), 1, 0)
        k("v_lshrrev_b32", V(5), 1, V(0))
        k("v_lshlrev_b32", V(7), 1, V(5))
        k("s_movk_i32", S(sT0), 6144)
        k("v_mul_lo_u32", V(6), V(5), S(sT0))
        k("v_and_b32", V(5), 1, V(0))
        k("v_lshl_add_u32", V(6), V(5), 4, V(6))
        for p in range(4):
            k("buffer_load_ushort", V(8 + p), V(7), S(sTB, 4), 0, mods=f"offen offset:{p*256}")
        k("s_lshl_b32", S(sT0), S(78), 5)
        for p in range(4):
            k("buffer_load_dwordx4", V(12 + 4 * p, 4), V(6), S(sTA, 4), S(sT0), mods="offen")
            if p < 3:
                k("s_add_u32", S(sT0), S(sT0), hex(128 * 6144))
        self.stamp("p0")
        for rnd, (srdreg, sb) in enumerate(((sTC, PB0), (sTD, PB1))):
            self.pblock_params(rnd, srdreg, sb)
            k("v_lshrrev_b32", V(5), 3, V(vLANE))
            k("v_mul_lo_u32", V(5), V(5), S(sb))
            k("v_and_b32", V(28), 7, V(vLANE))
            k("v_lshl_add_u32", V(5), V(28), 4, V(5))
            k("s_lshl_b32", S(sT0), S(sW), 13)
            k("s_add_u32", S(sT0), S(sT0), L_P + rnd * 4096)
            k("s_lshl_b32", S(sT0 + 1), S(sb), 3)
            k("s_mov_b32", S(sT0 + 2), S(sb + 1))
            if rnd == 1:
                k("s_cmp_eq_u32", S(sb + 5), 1)
                k("s_cselect_b64", "exec", -1, 0)
            for b in range(4):
                k("s_mov_b32", "m0", S(sT0))
                self.pdma_last = k("buffer_load_dwordx4", V(5), S(srdreg, 4), S(sT0 + 2), mods="offen lds")
                if b < 3:
                    k("s_add_u32", S(sT0), S(sT0), 1024)
                    k("s_add_u32", S(sT0 + 2), S(sT0 + 2), S(sT0 + 1))
            if rnd == 1:
                k("s_mov_b64", "exec", -1)
        self.stamp("p0")
        k("s_lshl_b32", S(sT0), S(sGRP), 6)
        k("v_add_u32", V(5), S(sT0), V(vL16))
        k("v_subrev_u32", V(6), 16, V(5))
        k("v_max_i32", V(6), 0, V(6))
        k("s_lshl_b32", S(sT0 + 1), S(sW), 8)
        k("v_lshl_add_u32", V(7), V(vG), 4, S(sT0 + 1))
        k("v_lshl_add_u32", V(5), V(5), 10, V(7))
        k("v_lshl_add_u32", V(6), V(6), 10, V(7))
        for rt in range(5):
            if rt >= 2:
                k("s_mov_b32", S(sT0), hex((rt - 1) * 16384))
            for s in range(4):
                f = rt * 4 + s
                k("buffer_load_dwordx4", V(64 + 4 * f, 4), V(6 if rt == 0 else 5), S(sX, 4),
                  S(sT0) if rt >= 2 else 0, mods=f"offen offset:{s*64}")
        self.stamp("p0")
        k("s_add_u32", S(sTAG), S(sTAG), hex(TAGC))
        self.stamp("all")
        k("s_mov_b32", S(sT0), hex(NLOG2E))
        for p in range(4):
            c = 8 + p
            k("v_lshlrev_b32", V(c), 16, V(c))
            k("v_mul_f32", V(28), S(sT0), V(c))
            k("v_exp_f32", V(28), V(28))
            k("v_add_f32", V(28), 1.0, V(28))
            k("v_rcp_f32", V(28), V(28))
            k("v_mul_f32", V(c), V(c), V(28))
            self.round_bf16(c)
        ACC = 32
        for p in range(4):
            for d in range(4):
                wv = 12 + 4 * p + d
                k("v_lshlrev_b32", V(28), 16, V(wv))
                k("v_and_b32", V(29), "0xffff0000", V(wv))
                if p == 0:
                    k("v_mul_f32", V(ACC + 2 * d), V(8), V(28))
                    k("v_mul_f32", V(ACC + 2 * d + 1), V(8), V(29))
                else:
                    k("v_fmac_f32", V(ACC + 2 * d), V(8 + p), V(28))
                    k("v_fmac_f32", V(ACC + 2 * d + 1), V(8 + p), V(29))
        for sh in (2, 4, 8):
            for i in range(8):
                k("v_add_f32_dpp", V(ACC + i), V(ACC + i), V(ACC + i),
                  mods=f"row_shr:{sh} row_mask:0xf bank_mask:0xf bound_ctrl:0")
        k("s_lshl_b32", S(sT0), S(sW), 8)
        k("v_lshl_add_u32", V(28), V(vG), 6, S(sT0))
        k("v_and_b32", V(29), 1, V(vLANE))
        k("v_lshl_add_u32", V(28), V(29), 5, V(28))
        k("s_mov_b32", S(sT0), "0xc000c000")
        k("s_mov_b32", S(sT0 + 1), "0xc000c000")
        k("s_mov_b64", "exec", S(sT0, 2))
        k("ds_write_b128", V(28), V(ACC, 4), mods=f"offset:{L_MODRED}")
        k("ds_write_b128", V(28), V(ACC + 4, 4), mods=f"offset:{L_MODRED+16}")
        k("s_mov_b64", "exec", -1)
        k.barrier()
        k("v_lshlrev_b32", V(28), 2, V(vL16))
        k("v_lshl_add_u32", V(28), V(vG), 8, V(28))
        k("v_add_u32", V(28), L_MODRED, V(28))
        k("ds_read2_b32", V(30, 2), V(28), mods="offset0:0 offset1:16")
        k("ds_read2_b32", V(32, 2), V(28), mods="offset0:32 offset1:48")
        k("v_add_f32", V(30), V(30), V(31))
        k("v_add_f32", V(32), V(32), V(33))
        k("v_add_f32", V(30), V(30), V(32))
        self.allred_g(30, 31, "v_add_f32")
        self.round_bf16(30)
        k("s_lshr_b32", S(sT0), S(78), 5)
        k("s_cmp_eq_u32", S(sT0), 1)
        k("s_cselect_b32", S(sT0 + 1), "1.0", 0)
        k("s_cmp_eq_u32", S(sT0), 4)
        k("s_cselect_b32", S(sT0 + 1), "1.0", S(sT0 + 1))
        k("v_add_f32", V(30), S(sT0 + 1), V(30))
        self.round_bf16(30)
        k("v_lshlrev_b32", V(28), 2, V(vL16))
        k("s_lshl_b32", S(sT0), S(78), 6)
        k("s_add_u32", S(sT0), S(sT0), hex(WS_MOD))
        k("s_cmp_eq_u32", S(sW), 0)
        k("s_cselect_b32", S(sT0 + 1), S(79), 0)
        k("s_cmp_eq_u32", S(sT0 + 1), 1)
        k("s_cselect_b64", "exec", "0xffff", 0)
        k("buffer_store_dword", V(30), V(28), S(sWS, 4), S(sT0), mods="offen sc1")
        k("s_mov_b64", "exec", -1)
        k.wait_vm_id(self.pdma_last)
        k("v_bfe_u32", V(28), V(vLANE), 2, 2)
        k("v_lshlrev_b32", V(28), 7, V(28))
        k("v_lshl_add_u32", V(28), V(vG), 10, V(28))
        k("s_lshl_b32", S(sT0), S(sW), 13)
        k("v_add_u32", V(28), S(sT0), V(28))
        k("v_and_b32", V(29), 3, V(vLANE))
        for rnd, (srdreg, sb) in enumerate(((sTC, PB0), (sTD, PB1))):
            k("v_mad_u32_u24", V(30), V(29), S(sb + 4), V(28))
            k("s_cmp_eq_u32", S(sb + 4), 8)
            k("s_cselect_b32", S(sT0), 32, 8)
            k("s_add_u32", S(sT0 + 1), S(sT0), 64)
            k("v_add_u32", V(31), S(sT0), V(30))
            k("v_add_u32", V(32), 64, V(30))
            k("v_add_u32", V(33), S(sT0 + 1), V(30))
            D = 36 if rnd == 0 else 12
            for i in range(4):
                for half in range(2):
                    k("ds_read_b64_tr_b16", V(D + 4 * i + 2 * half, 2), V(30 + i),
                      mods=f"offset:{L_P + rnd*4096 + half*512}")
            if rnd == 1:
                k("s_cmp_eq_u32", S(sb + 5), 1)
                k("s_cselect_b64", "exec", -1, 0)
            k("s_mov_b32", S(sT0), S(sb + 2))
            for i in range(4):
                k("buffer_store_dwordx4", V(D + 4 * i, 4), V(vL16B), S(sWS, 4), S(sT0), mods="offen sc1")
                if i < 3:
                    k("s_add_u32", S(sT0), S(sT0), S(sb + 3))
            if rnd == 1:
                k("s_mov_b64", "exec", -1)
        k("s_mov_b32", S(sT0), "0x3f803f80")
        SUM, SQ = 52, 58
        for rt in range(5):
            first = True
            for s in range(4):
                for d in range(4):
                    xr = 64 + 4 * (rt * 4 + s) + d
                    k("v_dot2_f32_bf16", V(SUM + rt), V(xr), S(sT0), 0 if first else V(SUM + rt))
                    k("v_dot2_f32_bf16", V(SQ + rt), V(xr), V(xr), 0 if first else V(SQ + rt))
                    first = False
        for rt in range(5):
            k("v_permlane32_swap_b32", V(SUM + rt), V(SQ + rt))
            k("v_add_f32", V(SUM + rt), V(SUM + rt), V(SQ + rt))
        k("v_mov_b32", V(SUM + 5), V(SUM + 4))
        k("v_and_b32", V(28), 1, V(vG))
        k("v_lshlrev_b32", V(28), 9, V(28))
        k("v_lshl_add_u32", V(28), V(vL16), 5, V(28))
        k("v_lshrrev_b32", V(29), 1, V(vG))
        k("v_lshl_add_u32", V(28), V(29), 4, V(28))
        k("s_lshl_b32", S(sT0), S(sW), 2)
        k("v_add_u32", V(28), S(sT0), V(28))
        for pr in range(3):
            a, b = SUM + 2 * pr, SUM + 2 * pr + 1
            k("v_permlane16_swap_b32", V(a), V(b))
            k("v_add_f32", V(a), V(a), V(b))
            k("ds_write_b32", V(28), V(a), mods=f"offset:{L_ST1 + pr*1024}")
        k.wait_all()
        k.barrier()
        self.stamp()
        k("s_lshl_b32", S(sT0), S(sWG), 2)
        k("s_add_u32", S(sT0), S(sT0), hex(WS_F0))
        k("v_mov_b32", V(28), S(sTAG))
        k("v_mov_b32", V(29), 0)
        k("s_cmp_eq_u32", S(sW), 0)
        k("s_cselect_b64", "exec", 1, 0)
        k("buffer_store_dword", V(28), V(29), S(sWS, 4), S(sT0), mods="offen sc1")
        k("s_mov_b64", "exec", -1)
        k("v_lshlrev_b32", V(28), 5, V(vL16))
        AB = 16
        for rt in range(5):
            k("ds_read_b128", V(32, 4), V(28), mods=f"offset:{L_ST1 + rt*512}")
            k("ds_read_b128", V(36, 4), V(28), mods=f"offset:{L_ST1 + rt*512 + 16}")
            self.ln_ab(32, 36, AB + 2 * rt, 4)
        for f in reversed(range(20)):
            rt = f // 4
            for d in range(4):
                k("v_lshlrev_b32", V(32 + 2 * d), 16, V(64 + 4 * f + d))
                k("v_and_b32", V(33 + 2 * d), "0xffff0000", V(64 + 4 * f + d))
            for d in range(4):
                k("v_pk_fma_f32", V(64 + 8 * f + 2 * d, 2), V(32 + 2 * d, 2), V(AB + 2 * rt, 2), V(AB + 2 * rt, 2),
                  mods="op_sel:[0,0,1] op_sel_hi:[1,0,1]")

    def ln_ab(self, vs, vq, dst, n):
        k = self.k
        for i in range(1, n):
            k("v_add_f32", V(vs), V(vs), V(vs + i))
            k("v_add_f32", V(vq), V(vq), V(vq + i))
        k("v_mul_f32", V(vs), "0x3b000000", V(vs))
        k("v_mul_f32", V(vq), "0x3b000000", V(vq))
        k("v_fma_f32", V(vq), "-" + V(vs), V(vs), V(vq))
        k("v_max_f32", V(vq), 0, V(vq))
        k("v_add_f32", V(vq), "0x3727c5ac", V(vq))
        k("v_rsq_f32", V(dst), V(vq))
        k("v_mul_f32", V(dst + 1), V(vs), V(dst))
        k("v_sub_f32", V(dst + 1), 0, V(dst + 1))

    def epilogue(self):
        k = self.k
        k.label("L_fin")
        k.wait_all()
        if self.stamps:
            self.stamp("all")
            k.wait_all()
            k("s_lshl_b32", S(sT0), S(sWG), 2)
            k("s_add_u32", S(sT0), S(sT0), S(sW))
            k("s_lshl_b32", S(sT0), S(sT0), 7)
            k("s_add_u32", S(sT0), S(sT0), hex(WS_DBG))
            k("v_mov_b32", V(5), 0)
            k("s_mov_b64", "exec", 1)
            for i in range(self.nst):
                k("v_mov_b32", V(6), S(STAMPS[i]))
                k("buffer_store_dword", V(6), V(5), S(sWS, 4), S(sT0), mods=f"offen offset:{4*i}")
            k("v_mov_b32", V(6), S(sFAIL))
            k("buffer_store_dword", V(6), V(5), S(sWS, 4), S(sT0), mods=f"offen offset:60")
            k("s_mov_b64", "exec", -1)
        k("s_or_b32", S(sT0), S(sWG), S(sW))
        k("s_cmp_eq_u32", S(sT0), 0)
        k("s_cselect_b64", "exec", 1, 0)
        k("v_mov_b32", V(5), 0)
        k("v_mov_b32", V(6), S(sTAG))
        k("buffer_store_dword", V(6), V(5), S(sWS, 4), 0, mods=f"offen offset:{WS_EPOCH} sc1")
        k.label("L_end")
        k("s_endpgm")
        k.raw("L_code_end:")

    def build(self):
        from phases import phase1, phase2, phase3, phase4
        self.prologue()
        self.phase0()
        k = self.k
        k("s_mov_b32", S(sT0 + 2), hex(WS_F0))
        self.poll(vL16B, sT0 + 2, 4, 32)
        self.stamp()
        if self.stop >= 1:
            phase1(self)
        if self.stop >= 2:
            phase2(self)
        if self.stop >= 3:
            phase3(self)
        if self.stop >= 4:
            phase4(self)
        self.epilogue()
        head = open("adaLN_cond__sliding_local_dilated__dense_activation_silu__prompt.s.ref").read()
        hdr = []
        for line in head.splitlines():
            if line.startswith("; @launch"):
                hdr.append(f"; @launch grid=(256,1,1) block=(256,1,1) lds={LDS_BYTES}")
                break
            hdr.append(line)
        out = "\n".join(hdr) + f"""
.amdgcn_target "amdgcn-amd-amdhsa--gfx950"
.text
.globl {KNAME}
.p2align 8
.type {KNAME},@function
{KNAME}:
""" + k.text() + f"""
.section .rodata,"a"
.p2align 6
.amdhsa_kernel {KNAME}
  .amdhsa_next_free_vgpr 512
  .amdhsa_next_free_sgpr 102
  .amdhsa_accum_offset 256
  .amdhsa_group_segment_fixed_size 0
  .amdhsa_kernarg_size 88
  .amdhsa_user_sgpr_count 2
  .amdhsa_user_sgpr_kernarg_segment_ptr 1
  .amdhsa_system_sgpr_workgroup_id_x 1
.end_amdhsa_kernel
"""
        return out


if __name__ == "__main__":
    import argparse
    ap = argparse.ArgumentParser()
    ap.add_argument("--stop", type=int, default=99)
    ap.add_argument("--stamps", action="store_true")
    ap.add_argument("-o", default="k.s")
    a = ap.parse_args()
    g = Gen(a.stop, a.stamps)
    open(a.o, "w").write(g.build())
    print("written", a.o, g.k.count)
```
